```python
import torch

def _softmax(x, axis=-1):
    return torch.softmax(x, dim=axis)
def _gelu(x):
    return torch.nn.functional.gelu(x, approximate="tanh")
def _silu(x):
    return torch.nn.functional.silu(x)
def _sigmoid(x):
    return torch.sigmoid(x)
def _layernorm(x, axis=-1, eps=1e-5):
    m = x.mean(dim=axis, keepdim=True)
    v = x.var(dim=axis, keepdim=True, unbiased=False)
    return (x - m) / torch.sqrt(v + eps)
def _scatter_add(tgt, idx, src, axis=0):
    return tgt.clone().index_add_(axis, idx, src)
def _segment_sum(src, seg, n):
    out = torch.zeros((n,) + src.shape[1:], dtype=src.dtype)
    return out.index_add_(0, seg, src)
def _pad(x, pw):
    flat = tuple(v for pair in reversed(pw) for v in pair)
    return torch.nn.functional.pad(x, flat)

kernel_name = 'sequential_preLN__spectral_gfnet__mixer_s_mlp__prompt'

def setup_inputs():

    _w = (lambda a: (lambda t: t.to(torch.bfloat16) if t.is_floating_point() else t)(torch.as_tensor(a)))
    def _A_setup():
        B, S, D = 1, 2048, 640
        Df = D // 2 + 1
        return {
            "x": _w((lambda *s: torch.randn(*s, dtype=torch.bfloat16) * 0.05)(B, S, D)),
            "w_r": _w((lambda *s: torch.randn(*s, dtype=torch.bfloat16) * 0.4)(S, Df) * 0.02),
            "w_i": _w((lambda *s: torch.randn(*s, dtype=torch.bfloat16) * 0.4)(S, Df) * 0.02),
        }
    _A_in = _A_setup()

    def _B_setup():
        B, S, D, F = 1, 2048, 640, 1728
        return {
            "x":  _w((lambda *s: torch.randn(*s, dtype=torch.bfloat16) * 0.05)(B, S, D)),
            "w1": _w((lambda *s: torch.randn(*s, dtype=torch.bfloat16) * 0.8)(D, D) * (D ** -0.5)),
            "w2": _w((lambda *s: torch.randn(*s, dtype=torch.bfloat16) * 0.8)(D, D) * (D ** -0.5)),
            "w3": _w((lambda *s: torch.randn(*s, dtype=torch.bfloat16) * 0.8)(D, F) * (D ** -0.5)),
            "w4": _w((lambda *s: torch.randn(*s, dtype=torch.bfloat16) * 0.8)(F, D) * (F ** -0.5)),
        }
    _B_in = _B_setup()

    return {
        "A_x": _A_in["x"],
        "A_w_r": _A_in["w_r"],
        "A_w_i": _A_in["w_i"],
        "B_x": _B_in["x"],
        "B_w1": _B_in["w1"],
        "B_w2": _B_in["w2"],
        "B_w3": _B_in["w3"],
        "B_w4": _B_in["w4"],
    }

def reference(A_x, A_w_r, A_w_i, B_x, B_w1, B_w2, B_w3, B_w4):
    def _A_ref(x, w_r, w_i):
        B, S, D = x.shape
        X = (lambda x, axes=(-2,-1): torch.fft.rfft2(x.float(), dim=axes))(x, axes=(-2, -1))
        W = w_r + 1j * w_i
        X = X * W
        y = (lambda x, s, axes=(-2,-1): torch.fft.irfft2(x, s=s, dim=axes).to(torch.bfloat16))(X, (S, D), axes=(-2, -1))
        return y

    def _B_ref(x, w1, w2, w3, w4):
        B, S, D = x.shape
        h = _gelu(_layernorm(x, axis=-1) @ w1)
        c = D // 4
        g0 = _pad(h[:, :, 0*c:1*c], ((0, 0), (1, 0), (0, 0)))[:, :S, :]
        g1 = _pad(h[:, :, 1*c:2*c], ((0, 0), (0, 1), (0, 0)))[:, 1:, :]
        g2 = _pad(h[:, :, 2*c:3*c], ((0, 0), (2, 0), (0, 0)))[:, :S, :]
        g3 = _pad(h[:, :, 3*c:   ], ((0, 0), (0, 2), (0, 0)))[:, 2:, :]
        hs = torch.concatenate([g0, g1, g2, g3], axis=-1) @ w2
        x1 = x + hs
        h2 = _gelu(_layernorm(x1, axis=-1) @ w3) @ w4
        return x1 + h2

    x = A_x
    h = x + _A_ref(_layernorm(x, axis=-1), A_w_r, A_w_i)
    h2 = h + _B_ref(_layernorm(h, axis=-1), B_w1, B_w2, B_w3, B_w4)
    return h2
```

```python
import re
TRANS = ("v_exp_f32","v_log_f32","v_rcp_f32","v_rsq_f32","v_sqrt_f32","v_sin_f32","v_cos_f32")
REG = re.compile(r'^(-|\|)?([vas])(\d+|\[(\d+):(\d+)\])\|?$')
def regs_of(tok):
    tok = tok.strip()
    if tok.startswith("neg(") or tok.startswith("abs("): tok = tok[4:-1]
    if tok == "vcc": return [("s",106),("s",107)]
    if tok == "exec": return [("s",126),("s",127)]
    if tok == "m0": return [("s",124)]
    m = REG.match(tok)
    if not m: return []
    if m.group(4) is not None: return [(m.group(2), i) for i in range(int(m.group(4)), int(m.group(5))+1)]
    return [(m.group(2), int(m.group(3)))]
PROBES=[False]
NODST = ("s_cmp","s_waitcnt","s_nop","s_barrier","s_branch","s_cbranch","s_endpgm","s_setprio","s_sleep","s_bitcmp")
class Kern:
    def __init__(s, name, grid, block=256, lds=0, vgpr=128, agpr=0, sgpr=96):
        s.name=name; s.grid=grid; s.block=block; s.lds=lds; s.vgpr=vgpr; s.agpr=agpr; s.sgpr=sgpr
        s.out=[]; s.t=0; s.reset(); s.nlab=0; s.maxv=0; s.maxa=-1
    def reset(s):
        s.vw={}; s.tw={}; s.mw={}; s.mc={}; s.dw={}; s.sw={}; s.sd={}; s.ow={}; s.m0w=-99; s.exw=-99
        s.vm=[]; s.lg=[]
    def raw(s, text): s.out.append(text)
    def comment(s, text): s.out.append("  ; "+text)
    def nop(s, n):
        while n>0:
            k=min(n,16); s.out.append(f"  s_nop {k-1}"); s.t+=k; n-=k
    def label(s, name):
        s.out.append(name+":")
    def newlabel(s, base="L"):
        s.nlab+=1; return f"{s.name}_{base}{s.nlab}"
    def drain(s):
        s.wait(vm=0, lg=0); s.nop(12);
    def fresh(s):
        s.reset()
    def wait(s, vm=None, lg=None):
        p=[]
        if vm is not None:
            vm=min(vm,63); p.append(f"vmcnt({vm})"); s.vm=s.vm[len(s.vm)-vm:] if vm>0 else []
        if lg is not None:
            lg=min(lg,15); p.append(f"lgkmcnt({lg})"); s.lg=s.lg[len(s.lg)-lg:] if lg>0 else []
        s.out.append("  s_waitcnt "+" ".join(p)); s.t+=1
    def probe(s):
        if not PROBES[0]: return
        i=getattr(s,"np",0); s.np=i+1
        assert i<12
        s.out.append(f"  s_memtime s[{56+2*i}:{57+2*i}]"); s.lg.append((set(),True))
    def tag(s, t): s.vm[-1].add(("x",t))
    def wait_tag(s, t):
        for i in range(len(s.vm)-1,-1,-1):
            if ("x",t) in s.vm[i]: s.wait(vm=len(s.vm)-1-i); return
    def __call__(s, text):
        for ln in text.strip().split("\n"):
            ln=ln.split(";")[0].strip()
            if ln: s.ins(ln)
    def ins(s, text):
        sp=text.split(None,1); op=sp[0]; rest=sp[1] if len(sp)>1 else ""
        parts=[p.strip() for p in re.split(r',(?![^\[]*\])', rest)] if rest else []
        mods=""
        if parts:
            l=parts[-1].split(None,1); parts[-1]=l[0]; mods=l[1] if len(l)>1 else ""
        ops=[regs_of(p) for p in parts]
        isv=op.startswith("v_"); mf=op.startswith("v_mfma"); valu=isv and not mf
        vmem=op.startswith("buffer_") or op.startswith("global_"); ds=op.startswith("ds_"); smem=op.startswith("s_load") or op.startswith("s_memtime") or op.startswith("s_memrealtime")
        lds_dma = vmem and re.search(r'\blds\b', mods) is not None
        dpp = valu and re.search(r'row_|quad_perm|wave_|_dpp', text) is not None
        W=[];Rd=[]
        if valu:
            if op.startswith("v_permlane") or op.startswith("v_swap"): W=ops[0]+ops[1]; Rd=W[:]
            elif re.match(r'v_(add|sub|subrev|addc|subb)_co', op): W=ops[0]+ops[1]; Rd=sum(ops[2:],[])
            elif op=="v_nop": pass
            else:
                W=ops[0]; Rd=sum(ops[1:],[])
                if op.startswith("v_cmpx"): W=W+regs_of("exec")
                if re.match(r'v_(fmac|mac|dot2c|pk_fmac|writelane)', op) or dpp or "dst_unused:UNUSED_PRESERVE" in mods: Rd=Rd+ops[0]
                if op.startswith("v_cndmask") and len(ops)==3: Rd=Rd+regs_of("vcc")
        elif mf: W=ops[0]; Rd=sum(ops[1:],[])
        elif vmem:
            if "load" in op and not lds_dma: W=ops[0]; Rd=sum(ops[1:],[])
            else: Rd=sum(ops,[])
        elif ds:
            if op.startswith("ds_write"): Rd=sum(ops,[])
            else: W=ops[0]; Rd=sum(ops[1:],[])
        elif op.startswith(NODST): Rd=sum(ops,[])
        else: W=ops[0]; Rd=sum(ops[1:],[])
        if "saveexec" in op: W=W+regs_of("exec")
        for r in W+Rd:
            if r[0]=="v": s.maxv=max(s.maxv,r[1])
            if r[0]=="a": s.maxa=max(s.maxa,r[1])
        touch=set(Rd)|set(W)
        tv = set(Rd) if (vmem and W) else touch
        nv=None
        for i in range(len(s.vm)-1,-1,-1):
            if s.vm[i]&tv: nv=len(s.vm)-1-i; break
        nl=None
        tl = set(Rd) if (ds and W and not any(e[1] for e in s.lg)) else touch
        for i in range(len(s.lg)-1,-1,-1):
            if s.lg[i][0]&tl:
                nl=len(s.lg)-1-i
                if any(e[1] for e in s.lg): nl=0
                break
        if nv is not None or nl is not None: s.wait(vm=nv, lg=nl)
        need=0
        def req(tp,d):
            nonlocal need
            need=max(need, d-(s.t-tp-1))
        vr=[r for r in Rd if r[0] in "va"]; vw=[r for r in W if r[0] in "va"]; sr=[r for r in Rd if r[0]=="s"]
        if mf:
            passes = 8 if "32x32" in op else 4
            for r in vr:
                if r in s.vw: req(s.vw[r],2)
                if r in s.dw: req(s.dw[r][0],3)
            for r in ops[1]+ops[2]:
                if r in s.mw: req(s.mw[r][0], s.mw[r][1]+4)
            for r in ops[3]:
                if r in s.mw:
                    if not (s.mw[r][2]==tuple(ops[3]) and s.mw[r][1]==passes): req(s.mw[r][0], s.mw[r][1]+2)
            for r in ops[0]:
                if r in s.mw and r not in ops[3]: req(s.mw[r][0], s.mw[r][1]+4)
            req(s.exw,4)
        else:
            if valu or vmem or ds:
                for r in vr+vw:
                    if r in s.mw: req(s.mw[r][0], s.mw[r][1]+4)
            if valu:
                for r in vw:
                    if r in s.mc: req(s.mc[r][0], s.mc[r][1]-1)
                    if r in s.sd: req(s.sd[r],2)
                istr = op.replace("_e32","").replace("_e64","") in TRANS
                for r in vr:
                    if r in s.tw and not istr: req(s.tw[r],1)
                    if r in s.ow: req(s.ow[r],1)
                    if r in s.vw and (dpp or op.startswith("v_permlane")): req(s.vw[r],2)
                    if r in s.vw and op.startswith("v_read"): req(s.vw[r],1)
                for r in vr+vw:
                    if r in s.dw:
                        if s.dw[r][1]==op and op.startswith("v_dot") and r not in ops[1]+ops[2]: pass
                        else: req(s.dw[r][0],3)
                for r in sr:
                    if r in s.sw: req(s.sw[r], 4 if re.match(r'v_(read|write)lane',op) else 2)
                if dpp: req(s.exw,5)
                if op.startswith("v_read") or op.startswith("v_permlane") or op.startswith("v_writelane"): req(s.exw,4)
            if vmem or ds:
                for r in vr:
                    if r in s.tw: req(s.tw[r],1)
                    if r in s.dw: req(s.dw[r][0],3)
                for r in vw:
                    if r in s.sd: req(s.sd[r],1)
            if vmem:
                for r in sr:
                    if r in s.sw: req(s.sw[r],5)
            if lds_dma or "addtid" in op: req(s.m0w,1)
            if not (valu or vmem or ds):
                for r in sr:
                    if r in s.sw: req(s.sw[r],1)
        if need>0: s.nop(need)
        s.out.append("  "+text); tn=s.t
        s.t+= (int(parts[0])+1 if op=="s_nop" else 1)
        for r in W:
            for d in (s.vw,s.tw,s.mw,s.dw,s.sw,s.ow): d.pop(r,None)
        if mf:
            for r in ops[0]: s.mw[r]=(tn,passes,tuple(ops[0]))
            for r in ops[3]: s.mc[r]=(tn,passes)
        elif valu:
            for r in W:
                if r[0]=="s":
                    s.sw[r]=tn
                    if r[1]==126: s.exw=tn
                else:
                    s.vw[r]=tn
                    if op.replace("_e32","").replace("_e64","") in TRANS: s.tw[r]=tn
                    if op.startswith("v_dot"): s.dw[r]=(tn,op)
                    if "dst_sel" in mods or ("op_sel" in mods and not op.startswith("v_pk")): s.ow[r]=tn
        elif vmem:
            s.vm.append(set(W))
            if "store" in op and len(ops[0])>2:
                for r in ops[0]: s.sd[r]=tn
        elif ds: s.lg.append((set(W),False))
        elif smem: s.lg.append((set(W),True))
        else:
            if ("s",124) in W: s.m0w=tn
            if op=="s_waitcnt": raise Exception("use wait()")
    def text(s):
        out=s.out
        if getattr(s,"stamp",None) is not None:
            out=["  s_memrealtime s[88:89]","  s_memtime s[86:87]"]
            for l in s.out:
                if l.strip()=="s_endpgm":
                    out+=["  "+x for x in f"""s_waitcnt vmcnt(0) lgkmcnt(0)
s_memrealtime s[90:91]
s_memtime s[82:83]
s_load_dwordx2 s[92:93], s[0:1], 80
s_mov_b64 exec, -1
v_lshrrev_b32 v1, 6, v0
v_lshlrev_b32 v1, 6, v1
s_lshl_b32 s84, s2, 9
s_waitcnt lgkmcnt(0)
s_add_u32 s92, s92, {hex(0x8000000+s.stamp*0x80000)}
s_addc_u32 s93, s93, 0
s_mov_b32 s94, 0x80000
s_mov_b32 s95, 0x00020000
v_mov_b32 v2, s88
v_mov_b32 v3, s86
v_mov_b32 v4, s90
v_mov_b32 v5, s82
s_mov_b64 exec, 1
buffer_store_dwordx4 v[2:5], v1, s[92:95], s84 offen""".split("\n")]
                    for q in range(3):
                        out+=["  s_nop 2"]+[f"  v_mov_b32 v{2+j}, s{56+8*q+2*j}" for j in range(4)]+[f"  buffer_store_dwordx4 v[2:5], v1, s[92:95], s84 offen offset:{16+16*q}"]
                    out.append("  s_endpgm")
                else: out.append(l)
            s.maxv=max(s.maxv,5)
        return [f".globl {s.name}", ".p2align 8", f".type {s.name},@function", f"{s.name}:"]+out
    def desc(s):
        nv=(s.maxv+1+3)//4*4; nv=max(nv,4)
        tot=nv+(s.maxa+1)
        return [".p2align 6", f".amdhsa_kernel {s.name}", f"  .amdhsa_next_free_vgpr {tot}", f"  .amdhsa_next_free_sgpr {s.sgpr}",
            f"  .amdhsa_accum_offset {nv}", "  .amdhsa_group_segment_fixed_size 0", "  .amdhsa_kernarg_size 88",
            "  .amdhsa_user_sgpr_count 2", "  .amdhsa_user_sgpr_kernarg_segment_ptr 1", "  .amdhsa_system_sgpr_workgroup_id_x 1",
            ".end_amdhsa_kernel"]
def program(kerns, launches=None, stamp=False):
    out=[]
    for i,k in enumerate(kerns): k.stamp = i if stamp else None
    for k in (launches or kerns):
        out.append(f"; @launch kernel={k.name} grid=({k.grid},1,1) block=({k.block},1,1) lds={k.lds}")
    out+=['.amdgcn_target "amdgcn-amd-amdhsa--gfx950"', ".text"]
    for k in kerns: out+=k.text()
    out.append("code_end:")
    out.append('.section .rodata,"a"')
    for k in kerns: out+=k.desc()
    return "\n".join(out)+"\n"
class Alloc:
    def __init__(s, lo, hi): s.free=set(range(lo,hi))
    def get(s, n=1, align=None):
        align=align or (1 if n==1 else 2 if n<=3 else 4 if False else 2)
        for b in sorted(s.free):
            if b%align==0 and all((b+i) in s.free for i in range(n)):
                for i in range(n): s.free.discard(b+i)
                return b
        raise Exception("out of regs")
    def put(s, b, n=1):
        for i in range(n): s.free.add(b+i)
def v(b,n=1): return f"v{b}" if n==1 else f"v[{b}:{b+n-1}]"
def a(b,n=1): return f"a{b}" if n==1 else f"a[{b}:{b+n-1}]"
def sg(b,n=1): return f"s{b}" if n==1 else f"s[{b}:{b+n-1}]"
def f2u(x):
    import struct; return "0x%08x"%struct.unpack("<I",struct.pack("<f",x))[0]
```

```python
from asmfw import *
import math
OZ=0x0000000; OWT=0x0400000; OY=0x0800000; OH=0x0C00000; OA1=0x1000000; OST1=0x1400000; OP=0x1800000
OX1=0x1C00000; OST2=0x2000000; OG=0x2400000; OW1=0x3000000; OW2=0x3100000; OW3=0x3200000; OW4=0x3600000; OCS=0x3A00000
ZSZ=352*8192; ACTSZ=20*2048*64
def srd(k, base, ptr_s, off, size):
    if off: k(f"s_add_u32 s{base}, s{ptr_s}, {hex(off)}\ns_addc_u32 s{base+1}, s{ptr_s+1}, 0")
    else: k(f"s_mov_b32 s{base}, s{ptr_s}\ns_mov_b32 s{base+1}, s{ptr_s+1}")
    k(f"s_mov_b32 s{base+2}, {hex(size)}\ns_mov_b32 s{base+3}, 0x00020000")
def bf16r(k, d, s):
    k(f"v_cvt_pk_bf16_f32 v{d}, v{s}, v{s}\nv_lshlrev_b32 v{d}, 16, v{d}")
def sincos(k, c, s, ang):
    k(f"v_cos_f32 v{c}, v{ang}\nv_sin_f32 v{s}, v{ang}")
def cvt(k, d, lo, hi): k(f"v_cvt_pk_bf16_f32 v{d}, {lo}, {hi}")
def mfma(k, d, a_, b_, c=None):
    cs = "0" if c is None else v(c,4)
    k(f"v_mfma_f32_16x16x32_bf16 {v(d,4)}, {v(a_,4)}, {v(b_,4)}, {cs}")
def unpack(k, lo, hi, src):
    k(f"v_lshlrev_b32 v{lo}, 16, v{src}\nv_and_b32 v{hi}, 0xffff0000, v{src}")
def dft32_consts(k, al, lane15f, hf, order):
    C=[al.get(4,4) for _ in range(2)]; S=[al.get(4,4) for _ in range(2)]; NS=[al.get(4,4) for _ in range(2)]
    t=al.get(6,2); base=al.get(); step=al.get()
    hs = 8 if order=='nat' else 4
    k(f"v_mul_f32 v{step}, {f2u(1/32)}, v{lane15f}")
    k(f"v_mul_f32 v{base}, v{hf}, v{step}\nv_mul_f32 v{base}, {f2u(float(hs))}, v{base}")
    for p in range(4):
        for e in range(2):
            j=2*p+e; off = j if order=='nat' else 16*(j>>2)+(j&3)
            k(f"v_mov_b32 v{t+4+e}, v{base}\nv_fmac_f32 v{t+4+e}, {f2u(float(off))}, v{step}")
            sincos(k, t+e, t+2+e, t+4+e)
        cvt(k, C[0]+p, f"v{t}", f"v{t+1}"); cvt(k, S[0]+p, f"v{t+2}", f"v{t+3}")
        k(f"v_xor_b32 v{C[1]+p}, 0x80000000, v{C[0]+p}\nv_xor_b32 v{S[1]+p}, 0x80000000, v{S[0]+p}")
        k(f"v_xor_b32 v{NS[0]+p}, 0x80008000, v{S[0]+p}\nv_xor_b32 v{NS[1]+p}, 0x8000, v{S[0]+p}")
    al.put(t,6); al.put(base); al.put(step)
    return C,S,NS
def reduce2rows(k, pA, qA, pB, qB, t2):
    k(f"v_permlane32_swap_b32 v{pA}, v{qA}\nv_permlane32_swap_b32 v{pB}, v{qB}")
    k(f"v_add_f32 v{pA}, v{pA}, v{qA}\nv_add_f32 v{pB}, v{pB}, v{qB}")
    k(f"v_permlane16_swap_b32 v{pA}, v{pB}\nv_add_f32 v{pA}, v{pA}, v{pB}")
    for r in (8,4,2,1): k(f"v_add_f32_dpp v{pA}, v{pA}, v{pA} row_ror:{r} row_mask:0xf bank_mask:0xf")
    k(f"v_mov_b32 v{t2}, v{pA}\nv_permlane32_swap_b32 v{pA}, v{t2}")
def ln_stats(k, p, q, t, n=640):
    k(f"v_mul_f32 v{p}, {f2u(1/n)}, v{p}\nv_mul_f32 v{q}, {f2u(1/n)}, v{q}\nv_fma_f32 v{q}, -v{p}, v{p}, v{q}\nv_max_f32 v{q}, 0, v{q}")
    k(f"v_cvt_pk_bf16_f32 v{t}, v{p}, v{q}\nv_lshlrev_b32 v{p}, 16, v{t}\nv_and_b32 v{q}, 0xffff0000, v{t}")
    k(f"v_add_f32 v{q}, {f2u(1e-5)}, v{q}"); bf16r(k,q,q)
    k(f"v_sqrt_f32 v{q}, v{q}"); bf16r(k,q,q); k(f"v_rcp_f32 v{q}, v{q}")

PFC=[True]
def codepf(k, target, end, vt, vd, sb, tid="v0", add=0):
    if not PFC[0]: return
    lab=k.newlabel("pc")
    k(f"s_getpc_b64 s[{sb}:{sb+1}]"); k.label(lab)
    k(f"s_add_u32 s{sb}, s{sb}, {target}-{lab}\ns_addc_u32 s{sb+1}, s{sb+1}, 0")
    k(f"v_lshlrev_b32 v{vt}, 7, {tid}")
    if add: k(f"v_add_u32 v{vt}, {add}, v{vt}")
    k(f"v_min_u32 v{vt}, {end}-{target}-4, v{vt}\nglobal_load_dword v{vd}, v{vt}, s[{sb}:{sb+1}]")

WCS=8320; WTSZ=330*WCS
SC=dict(z="",wt="",y="",wf="",h="",g="")
```

```python
from common import *
from collections import deque
GSZ=54*2048*64
KC=math.sqrt(2/math.pi)*2*math.log2(math.e)
def hreduce(k, p, q):
    k(f"v_permlane32_swap_b32 v{p}, v{q}\nv_add_f32 v{p}, v{p}, v{q}\nv_mov_b32 v{q}, v{p}")
    k(f"v_permlane16_swap_b32 v{p}, v{q}\nv_add_f32 v{p}, v{p}, v{q}\nv_mov_b32 v{q}, v{p}")
    k(f"v_permlane32_swap_b32 v{p}, v{q}")
class Rec:
    def __init__(s): s.q=deque()
    def __call__(s,t):
        for l in t.strip().split("\n"):
            if l.strip(): s.q.append(l.strip())
PF={1:(OW3,0,16*140*1024//2),2:(OW3,16*140*1024//2,16*140*1024//2),3:(OW4,0,8*270*1024),4:None}
CFG={1:dict(D=8,sy=2),2:dict(D=8,sy=2),3:dict(D=6,sy=2),4:dict(D=10,sy=2)}
def prefetch_wave(k, nm, off, size, nbar, delay=0):
    per=(size//32+8191)//8192
    k.label(nm); k.fresh()
    k(f"v_and_b32 v1, 63, v0\nv_lshlrev_b32 v1, 7, v1\ns_lshr_b32 s8, s2, 3\ns_mul_i32 s8, s8, {per*8192}")
    k.wait(lg=0)
    srd(k,16,14,off,size)
    if delay: k(f"s_sleep {delay}")
    for i in range(per):
        k(f"buffer_load_dword v{2+i}, v1, s[16:19], s8 offen")
        if i<per-1: k("s_add_u32 s8, s8, 8192")
    for i in range(nbar): k("s_barrier")
    k("s_endpgm")
def gen_gemm(which, pf=False):
    NK,NT,RB,OACT,ASZ,OW,NG = {1:(20,5,1,OA1,ACTSZ,OW1,8),2:(20,5,1,OP,ACTSZ,OW2,8),3:(20,7,2,OX1,ACTSZ,OW3,16),4:(54,5,1,OG,GSZ,OW4,8)}[which]
    nm=f"g{which}"; D=CFG[which]["D"]; SY=CFG[which]["sy"]
    RINGF = NK*NT if which!=4 else 140
    pf = pf and PF[which] is not None
    k=Kern(nm+"_kernel",256,block=512,lds=RINGF*1024)
    al=Alloc(1,256)
    k("s_load_dwordx2 s[14:15], s[0:1], 80")
    if which==4: k("s_load_dwordx2 s[4:5], s[0:1], 64")
    k(f"s_cmp_ge_u32 s2, 256\ns_cbranch_scc1 {nm}_end")
    c=al.get(); h=al.get(); l16=al.get()
    k(f"v_lshrrev_b32 v{h}, 6, v0\nv_and_b32 v{l16}, 63, v0\nv_readfirstlane_b32 s3, v{h}")
    k(f"v_and_b32 v{c}, 15, v0\nv_lshrrev_b32 v{h}, 4, v{l16}\nv_lshlrev_b32 v{l16}, 4, v{l16}")
    k(f"s_cmp_ge_u32 s3, 4\ns_cbranch_scc1 {nm}_ld")
    if RB==1: k("s_and_b32 s12, s2, 7\ns_lshl_b32 s12, s12, 2\ns_lshr_b32 s13, s2, 3\ns_and_b32 s8, s13, 3\ns_add_u32 s12, s12, s8\ns_lshr_b32 s13, s13, 2\ns_lshl_b32 s12, s12, 6\ns_lshl_b32 s8, s3, 4\ns_add_u32 s12, s12, s8")
    else: k("s_and_b32 s12, s2, 7\ns_lshl_b32 s12, s12, 1\ns_lshr_b32 s13, s2, 3\ns_and_b32 s8, s13, 1\ns_add_u32 s12, s12, s8\ns_lshr_b32 s13, s13, 1\ns_lshl_b32 s12, s12, 7\ns_lshl_b32 s8, s3, 5\ns_add_u32 s12, s12, s8")
    k("s_lshl_b32 s11, s12, 6")
    row=al.get()
    k(f"v_add_u32 v{row}, s12, v{c}")
    if which==2:
        sh=al.get(4,1); t=al.get(2,1)
        k(f"v_bfrev_b32 v{t}, 1")
        for i,d in enumerate((-1,1,-2,2)):
            k(f"v_add_u32 v{sh+i}, {d}, v{row}\nv_cmp_gt_u32 vcc, 2048, v{sh+i}\nv_and_b32 v{t+1}, 15, v{sh+i}\nv_lshrrev_b32 v{sh+i}, 4, v{sh+i}\nv_lshlrev_b32 v{sh+i}, 10, v{sh+i}")
            k(f"v_lshl_add_u32 v{sh+i}, v{t+1}, 4, v{sh+i}\nv_lshl_add_u32 v{sh+i}, v{h}, 8, v{sh+i}\nv_cndmask_b32 v{sh+i}, v{t}, v{sh+i}, vcc")
        al.put(t,2)
        k("s_mov_b32 s10, 0")
    else: k("s_mov_b32 s10, s11")
    srd(k,20,14,OACT,ASZ)
    k.probe()
    nd=(NK*NT+3)//4
    AD = D+2
    st={"d":0,"a":0}
    def dma():
        i=st["d"]; st["d"]+=1
        pos=(4*i)%RINGF
        if i and pos==0: k("s_lshl_b32 s9, s3, 10")
        k(f"s_mov_b32 m0, s9\ns_add_u32 s9, s9, 4096\nbuffer_load_dwordx4 v{l16}, s[16:19], s8 offen lds\ns_add_u32 s8, s8, 4096")
        k.vm[-1].add(("x",i))
    def actl(kk,rb):
        vo = sh+kk//5 if which==2 else l16
        k(f"buffer_load_dwordx4 {a(((kk%AD)*RB+rb)*4,4)}, v{vo}, s[20:23], s10 offen offset:{1024*rb}")
        if rb==RB-1: k("s_add_u32 s10, s10, 0x20000")
    def loads_for(kk):
        L=[]
        if kk>=NK: return L
        L+=[(lambda r=rb: actl(kk,r)) for rb in range(RB)]
        return L
    for kk in range(3):
        for f in loads_for(kk): f()
    NP=NT//2
    k(f"s_mul_i32 s24, s13, {NT}\ns_add_u32 s25, s24, 1\ns_lshr_b32 s25, s25, 1\ns_and_b32 s26, s13, 1\ns_add_u32 s27, s25, {NP}\ns_sub_u32 s28, s25, 1\ns_cmp_eq_u32 s26, 0\ns_cselect_b32 s27, s27, s28")
    if NT==7: k("s_mul_i32 s24, s13, 3\ns_add_u32 s24, s24, 6\ns_cmp_ge_u32 s13, 12\ns_cselect_b32 s25, s24, s25\ns_cselect_b32 s27, 0x2000, s27")
    for i in range(NP): k(f"s_add_u32 s24, s25, {i}\ns_lshl_b32 s{30+i}, s24, 17\ns_add_u32 s{30+i}, s{30+i}, s11")
    k(f"s_lshl_b32 s{30+NP}, s27, 17\ns_lshl_b32 s26, s26, 3\ns_add_u32 s{30+NP}, s{30+NP}, s26\ns_add_u32 s{30+NP}, s{30+NP}, s11")
    if which==4:
        for i in range(NP): k(f"s_add_u32 s24, s25, {i}\ns_lshl_b32 s{34+i}, s24, 6")
        k(f"s_lshl_b32 s{34+NP}, s27, 6\ns_add_u32 s{34+NP}, s{34+NP}, s26")
    for kk in range(3,D):
        for f in loads_for(kk): f()
    acc=al.get(4*NT*RB,4); wf=[al.get(4*NT,4) for _ in range(2)]
    t0=al.get(); u=al.get(2,2)
    extra=deque()
    fill=Rec()
    def eload(off,sb):
        srd(k,sb,14,off,ACTSZ); r=al.get(10,4)
        for i in range(2): extra.append(lambda i=i: k(f"buffer_load_dwordx4 {v(r+4*i,4)}, v{l16}, s[{sb}:{sb+3}], s{30+i} offen"))
        extra.append(lambda: k(f"buffer_load_dwordx2 {v(r+8,2)}, v{l16}, s[{sb}:{sb+3}], s32 offen"))
        return r
    addin={}
    if which==2:
        hr=eload(OH,40); srd(k,44,14,OST1,2048*8); s1=al.get(2,2); rr=al.get(2,2); x=al.get(20,2)
        k(f"v_lshlrev_b32 v{t0}, 3, v{row}")
        extra.append(lambda: k(f"buffer_load_dwordx2 {v(s1,2)}, v{t0}, s[44:47], 0 offen"))
        fill(f"v_mov_b32 v{rr}, v{s1+1}")
        for i in range(10):
            unpack(fill,x+2*i,x+2*i+1,hr+i)
            fill(f"v_pk_add_f32 {v(x+2*i,2)}, {v(x+2*i,2)}, {v(s1,2)} op_sel_hi:[1,0] neg_lo:[0,1] neg_hi:[0,1]")
            cvt(fill,u,f"v{x+2*i}",f"v{x+2*i+1}"); unpack(fill,x+2*i,x+2*i+1,u)
            fill(f"v_pk_mul_f32 {v(x+2*i,2)}, {v(x+2*i,2)}, {v(rr,2)} op_sel_hi:[1,0]")
            cvt(fill,u,f"v{x+2*i}",f"v{x+2*i+1}"); unpack(fill,x+2*i,x+2*i+1,u)
        for i in range(5): addin[i]=[f"v_pk_add_f32 {v(acc+4*i+2*j,2)}, {v(acc+4*i+2*j,2)}, {v(x+4*i+2*j,2)}" for j in range(2)]
    if which==4:
        hr=eload(OH,40); xr=eload(OX1,44); x=al.get(20,2)
        for i in range(10):
            unpack(fill,x+2*i,x+2*i+1,hr+i); unpack(fill,u,u+1,xr+i)
            fill(f"v_pk_add_f32 {v(x+2*i,2)}, {v(x+2*i,2)}, {v(u,2)}")
        for i in range(5): addin[i]=[f"v_pk_add_f32 {v(acc+4*i+2*j,2)}, {v(acc+4*i+2*j,2)}, {v(x+4*i+2*j,2)}" for j in range(2)]
        fill(f"v_mul_u32_u24 v{t0}, 1280, v{row}\nv_lshl_add_u32 v{t0}, v{h}, 4, v{t0}")
    if which==3:
        srd(k,40,14,OST2,2048*64); s2=al.get(8,4); srd(k,44,14,OCS,112*64); cs=al.get(28,4); gc=al.get(12,2)
        for rb in range(2): extra.append(lambda rb=rb: k(f"buffer_load_dwordx4 {v(s2+4*rb,4)}, v{l16}, s[40:43], s11 offen offset:{1024*rb}"))
        k(f"v_lshlrev_b32 v{t0}, 4, v{h}\ns_mul_i32 s28, s13, 448")
        for i in range(7): extra.append(lambda i=i: k(f"buffer_load_dwordx4 {v(cs+4*i,4)}, v{t0}, s[44:47], s28 offen offset:{64*i}"))
        for rb in range(2):
            p=s2+4*rb; g=gc+6*rb
            fill(f"v_add_f32 v{p}, v{p}, v{p+2}\nv_add_f32 v{p+1}, v{p+1}, v{p+3}"); hreduce(fill,p,p+1); ln_stats(fill,p,p+1,p+2)
            fill(f"v_rcp_f32 v{g+4}, v{p+1}\nv_mul_f32 v{g+2}, {f2u(-KC)}, v{p+1}\nv_mul_f32 v{g}, v{p+1}, v{p+1}\nv_mul_f32 v{g}, v{g}, v{g+2}\nv_mul_f32 v{g}, {f2u(0.044715)}, v{g}")
            for i in range(7): addin[i*2+rb]=[f"v_pk_fma_f32 {v(acc+4*(rb*7+i)+2*j,2)}, {v(cs+4*i+2*j,2)}, {v(p,2)}, {v(acc+4*(rb*7+i)+2*j,2)} op_sel_hi:[1,0,1] neg_lo:[1,0,0] neg_hi:[1,0,0]" for j in range(2)]
    if which==1:
        gc=al.get(6,2)
        k(f"v_mov_b32 v{gc}, {f2u(-KC*0.044715)}\nv_mov_b32 v{gc+2}, {f2u(-KC)}\nv_mov_b32 v{gc+4}, 1.0")
    odst={1:(OP,ACTSZ),2:(OX1,ACTSZ),3:(OG,GSZ)}
    if which<4: srd(k,24,14,*odst[which])
    else: srd(k,24,4,0,2048*1280)
    lb=[l16]
    for i in range(1,(RINGF*1024+65535)//65536):
        r=al.get(); k(f"v_add_u32 v{r}, {65536*i}, v{l16}"); lb.append(r)
    def dsr(kk,i):
        o=((kk*NT+i)%RINGF)*1024
        k(f"ds_read_b128 {v(wf[kk&1]+4*i,4)}, v{lb[o>>16]} offset:{o&65535}")
    synced=[0]; slist=[]; cur=[-1]
    def sync(kend):
        kend=min(kend,NK)
        k("s_barrier"); synced[0]=kend; slist.append((cur[0],kend))
    k.probe()
    sync(1)
    for i in range(NT): dsr(0,i)
    k.probe()
    NM=NT*RB
    KADD=NK-3
    XS=2
    FS=XS+D+(len(extra)+1)//2
    for kk in range(NK):
        cur[0]=kk
        if kk in (5,10,15,30,45): k.probe()
        if kk+1<NK and synced[0]<kk+2:
            sync(kk+1+(SY if kk+1+SY<=NK-2 else 1))
        R=deque((lambda i=i: dsr(kk+1,i)) for i in range(NT)) if kk+1<NK else deque()
        L=deque(loads_for(kk+D))
        if kk>=XS:
            for _ in range(2):
                if extra: L.append(extra.popleft())
        nf = 0
        if kk>=min(FS,KADD-4): nf=(len(fill.q)+max(1,KADD-kk)-1)//max(1,KADD-kk)
        for m in range(NM):
            i,rb=m//RB,m%RB
            d=acc+4*(rb*NT+i)
            k(f"v_mfma_f32_16x16x32_bf16 {v(d,4)}, {v(wf[kk&1]+4*i,4)}, {a(((kk%AD)*RB+rb)*4,4)}, {'0' if kk==0 else v(d,4)}")
            for _ in range(2 if RB==1 else 1):
                if R: R.popleft()()
            if RB==1 and m>=2 or RB==2 and m>=5 and m%2==1:
                if L: L.popleft()()
            for _ in range((nf+NM-1)//NM):
                if fill.q and nf>0: k(fill.q.popleft()); nf-=0
            j=(kk-KADD)*NM+m-2
            if j in addin and 0<=j<NM:
                assert not fill.q
                for t in addin[j]: k(t)
        while L: L.popleft()()
    assert not extra and not fill.q
    k.probe()
    tmp=wf[0]
    def store(i, rb, vo, sbase):
        n=2 if i<NP else 1
        k(f"buffer_store_dwordx{2*n} {v(tmp+4*((i+rb*(NP+1))%7),2*n)}, v{vo}, s[24:27], s{sbase+i} offen offset:{1024*rb}")
    def pack(A,i,rb):
        n=2 if i<NP else 1; T=tmp+4*((i+rb*(NP+1))%7)
        for tt in range(n):
            x=A+4*(2*i+tt)
            cvt(k,T+2*tt,f"v{x}",f"v{x+1}"); cvt(k,T+2*tt+1,f"v{x+2}",f"v{x+3}")
    if which in (1,3):
        for rb in range(RB):
            A=acc+4*NT*rb; g=gc+6*rb
            for i in range(NP+1):
                xs=[A+8*i+2*j for j in range(4 if i<NP else 2)]; T=wf[1]+8*(i&1)
                for j,x in enumerate(xs): k(f"v_pk_mul_f32 {v(T+2*j,2)}, {v(x,2)}, {v(x,2)}")
                for j,x in enumerate(xs): k(f"v_pk_fma_f32 {v(T+2*j,2)}, {v(T+2*j,2)}, {v(g,2)}, {v(g+2,2)} op_sel_hi:[1,0,0]")
                for j,x in enumerate(xs): k(f"v_pk_mul_f32 {v(T+2*j,2)}, {v(T+2*j,2)}, {v(x,2)}")
                for j,x in enumerate(xs): k(f"v_exp_f32 v{T+2*j}, v{T+2*j}\nv_exp_f32 v{T+2*j+1}, v{T+2*j+1}")
                for j,x in enumerate(xs): k(f"v_pk_fma_f32 {v(T+2*j,2)}, {v(T+2*j,2)}, {v(g+4,2)}, {v(g+4,2)} op_sel_hi:[1,0,0]")
                for j,x in enumerate(xs): k(f"v_rcp_f32 v{T+2*j}, v{T+2*j}\nv_rcp_f32 v{T+2*j+1}, v{T+2*j+1}")
                for j,x in enumerate(xs): k(f"v_pk_mul_f32 {v(x,2)}, {v(x,2)}, {v(T+2*j,2)}")
                pack(A,i,rb); store(i,rb,l16,30)
    elif which==2:
        for i in range(3): pack(acc,i,0); store(i,0,l16,30)
        pq=al.get(4,2)
        from k3 import row_sums
        row_sums(k,pq,acc,20); hreduce(k,pq,pq+2)
        srd(k,16,14,OST2,2048*64)
        k(f"v_mov_b32 v{pq+1}, v{pq+2}\ns_lshr_b32 s28, s13, 1\ns_lshl_b32 s28, s28, 8\ns_and_b32 s29, s13, 1\ns_lshl_b32 s29, s29, 3\ns_add_u32 s28, s28, s29\ns_add_u32 s28, s28, s11\ns_mov_b64 exec, 0xffff\nbuffer_store_dwordx2 {v(pq,2)}, v{l16}, s[16:19], s28 offen")
    else:
        for i in range(3): pack(acc,i,0); store(i,0,t0,34)
    k.probe()
    k.label(nm+"_end"); k("s_endpgm")
    k.label(nm+"_ld"); k.fresh(); k.np=0
    k(f"s_sub_u32 s3, s3, 4\ns_lshr_b32 s13, s2, {5 if RB==1 else 4}\ns_mul_i32 s8, s13, {NK*NT*1024}\ns_lshl_b32 s9, s3, 10\ns_add_u32 s8, s8, s9")
    k.wait(lg=0)
    srd(k,16,14,OW,NG*NK*NT*1024)
    DW=CFG[which].get("DW",D)
    def upto(kend):
        while st["d"]<min(nd,(NT*min(kend,NK)+3)//4): dma()
    for j,(it,kend) in enumerate(slist):
        free = (slist[j-1][0] if j>0 else 0)
        upto(min(max(it,0)+DW, max(free,0)+RINGF//NT))
        k.wait_tag(min(nd,(NT*kend+3)//4)-1); k("s_barrier")
    k("s_endpgm")
    return k
def allk():
    from k1 import gen_k1
    from k2 import gen_k2
    from k3 import gen_k3
    return [gen_k1(),gen_k2(),gen_k3()]+[gen_gemm(i) for i in (1,2,3,4)]
```

```python
from common import *
NPREP1=84
def gen_k1():
    k=Kern("k1_kernel", 256+NPREP1, lds=18432)
    al=Alloc(1,198)
    k(f"s_cmp_ge_u32 s2, {256+NPREP1}\ns_cbranch_scc1 k1_end")
    k("s_load_dwordx4 s[4:7], s[0:1], 0\ns_load_dwordx2 s[8:9], s[0:1], 16\ns_load_dwordx2 s[10:11], s[0:1], 80")
    lane=al.get(); c=al.get(); h=al.get()
    pfr=al.get(2,1); assert pfr==4
    if PFC[0]:
        k("s_cmp_ge_u32 s2, 8\ns_cbranch_scc1 k1_go"); codepf(k,"k1_go","code_end",4,5,40)
        k(f"v_add_u32 v4, 32768, v4\nv_min_u32 v4, code_end-k1_go-4, v4\nglobal_load_dword v5, v4, s[40:41]"); k.label("k1_go")
    k(f"v_lshrrev_b32 v{h}, 6, v0\nv_and_b32 v{lane}, 63, v0\nv_readfirstlane_b32 s3, v{h}")
    k(f"v_and_b32 v{c}, 15, v0\nv_lshrrev_b32 v{h}, 4, v{lane}")
    k("s_cmp_ge_u32 s2, 256\ns_cbranch_scc1 k1_prep")
    k("s_lshr_b32 s12, s2, 3\ns_and_b32 s12, s12, 3\ns_and_b32 s13, s2, 7\ns_lshr_b32 s14, s2, 5\ns_lshl_b32 s14, s14, 3\ns_or_b32 s13, s13, s14")
    k("s_lshr_b32 s14, s13, 5\ns_lshl_b32 s14, s14, 2\ns_add_u32 s12, s12, s14\ns_and_b32 s13, s13, 31")
    k("s_lshl_b32 s14, s12, 3\ns_lshl_b32 s15, s3, 1\ns_add_u32 s14, s14, s15\ns_lshl_b32 s14, s14, 5\ns_add_u32 s14, s14, s13\ns_mul_i32 s14, s14, 1280\ns_add_u32 s15, s14, 40960")
    xo=al.get()
    k(f"v_mul_u32_u24 v{xo}, 320, v{h}\nv_lshl_add_u32 v{xo}, v{c}, 2, v{xo}")
    srd(k,16,4,0,2048*1280)
    k.probe()
    xr=[al.get(5,1) for _ in range(2)]
    for e in range(2):
        for j in range(5): k(f"buffer_load_dword v{xr[e]+j}, v{xo}, s[16:19], s{14+e} offen offset:{64*j}")
    srd(k,20,10,OZ,ZSZ)
    cf=al.get(); hf=al.get()
    k(f"v_cvt_f32_u32 v{cf}, v{c}\nv_cvt_f32_u32 v{hf}, v{h}")
    Bc=al.get(4,4); Bs=al.get(4,4); t=al.get(12,2); st=al.get(); ba=al.get()
    k(f"v_mul_f32 v{st}, {f2u(1/20)}, v{cf}\nv_mul_f32 v{ba}, v{hf}, v{st}\nv_mul_f32 v{ba}, {f2u(5.0)}, v{ba}")
    for j in range(5):
        k(f"v_mov_b32 v{t+10}, v{ba}\nv_fmac_f32 v{t+10}, {f2u(float(j))}, v{st}")
        sincos(k, t+j, t+5+j, t+10)
    cvt(k,Bc,f"v{t}",f"v{t+1}"); cvt(k,Bc+1,f"v{t+2}",f"v{t+3}"); cvt(k,Bc+2,f"v{t+4}","0"); k(f"v_mov_b32 v{Bc+3}, 0")
    cvt(k,Bs,f"-v{t+5}",f"-v{t+6}"); cvt(k,Bs+1,f"-v{t+7}",f"-v{t+8}"); cvt(k,Bs+2,f"-v{t+9}","0"); k(f"v_mov_b32 v{Bs+3}, 0")
    tc=al.get(8,2); ts=al.get(8,2)
    k(f"v_mul_f32 v{st}, {f2u(1/640)}, v{cf}\nv_mul_f32 v{ba}, v{hf}, v{st}\nv_mul_f32 v{ba}, {f2u(8.0)}, v{ba}")
    for tt in range(2):
        for r in range(4):
            k(f"v_mov_b32 v{t+10}, v{ba}\nv_fmac_f32 v{t+10}, {f2u(float(2*r+tt))}, v{st}")
            sincos(k, tc+4*tt+r, ts+4*tt+r, t+10)
    al.put(t,12); al.put(st); al.put(ba)
    C,S,NS=dft32_consts(k, al, cf, hf, 'nat')
    lw=al.get(); lr=al.get(); zo=al.get()
    k(f"s_mul_i32 s24, s3, 4608\nv_mul_u32_u24 v{lw}, 272, v{c}\nv_lshl_add_u32 v{lw}, v{h}, 5, v{lw}\nv_add_u32 v{lw}, s24, v{lw}")
    k(f"v_and_b32 v{lr}, 1, v0\nv_lshrrev_b32 v{zo}, 1, v{lane}\nv_lshlrev_b32 v{xo}, 4, v{lr}\nv_mul_u32_u24 v{lr}, 9216, v{lr}\nv_lshl_add_u32 v{lr}, v{zo}, 3, v{lr}")
    k(f"s_mul_i32 s24, s3, 272\nv_add_u32 v{lr}, s24, v{lr}\nv_lshl_add_u32 v{zo}, v{zo}, 13, v{xo}")
    k("s_lshl_b32 s25, s3, 18\ns_lshl_b32 s24, s13, 8\ns_add_u32 s25, s25, s24\ns_lshl_b32 s24, s12, 5\ns_add_u32 s25, s25, s24")
    k.probe()
    xf=[al.get(10,2) for _ in range(2)]; pq=[al.get(4,2) for _ in range(2)]
    for e in range(2):
        for j in range(5): unpack(k, xf[e]+2*j, xf[e]+2*j+1, xr[e]+j)
        p=pq[e]
        k(f"v_pk_add_f32 {v(p,2)}, {v(xf[e],2)}, {v(xf[e]+2,2)}\nv_pk_mul_f32 {v(p+2,2)}, {v(xf[e],2)}, {v(xf[e],2)}")
        for j in range(1,5):
            if j>1: k(f"v_pk_add_f32 {v(p,2)}, {v(p,2)}, {v(xf[e]+2*j,2)}")
            k(f"v_pk_fma_f32 {v(p+2,2)}, {v(xf[e]+2*j,2)}, {v(xf[e]+2*j,2)}, {v(p+2,2)}")
        k(f"v_add_f32 v{p}, v{p}, v{p+1}\nv_add_f32 v{p+2}, v{p+2}, v{p+3}")
    k.probe()
    reduce2rows(k, pq[0], pq[0]+2, pq[1], pq[1]+2, pq[0]+1)
    ln_stats(k, pq[0], pq[0]+1, pq[0]+2)
    k(f"v_mul_f32 v{pq[0]}, v{pq[0]}, v{pq[0]+1}")
    for e in range(2):
        k(f"v_readlane_b32 s{28+2*e}, v{pq[0]+1}, {16*e}\nv_readlane_b32 s{29+2*e}, v{pq[0]}, {16*e}")
    A=[[al.get(4,4) for _ in range(2)] for _ in range(2)]
    for e in range(2):
        k(f"v_mov_b32 v{pq[1]}, s{29+2*e}")
        for i in range(10): k(f"v_fma_f32 v{xf[e]+i}, v{xf[e]+i}, s{28+2*e}, -v{pq[1]}")
        for tt in range(2):
            x=xf[e]+tt
            cvt(k,A[e][tt],f"v{x}",f"v{x+2}"); cvt(k,A[e][tt]+1,f"v{x+4}",f"v{x+6}"); cvt(k,A[e][tt]+2,f"v{x+8}","0"); k(f"v_mov_b32 v{A[e][tt]+3}, 0")
    for e in range(2): al.put(xf[e],10); al.put(xr[e],5); al.put(pq[e],4)
    k.probe()
    Gr=[al.get(8,4) for _ in range(2)]; Gi=[al.get(8,4) for _ in range(2)]
    for e in range(2):
        for tt in range(2):
            mfma(k, Gr[e]+4*tt, A[e][tt], Bc); mfma(k, Gi[e]+4*tt, A[e][tt], Bs)
    tmp=al.get(16,2)
    Br=[A[0][0],A[1][0]]; Bi=[A[0][1],A[1][1]]
    for e in range(2):
        for i in range(0,8,2):
            k(f"v_pk_mul_f32 {v(tmp+i,2)}, {v(Gr[e]+i,2)}, {v(tc+i,2)}\nv_pk_mul_f32 {v(tmp+8+i,2)}, {v(Gi[e]+i,2)}, {v(tc+i,2)}")
            k(f"v_pk_fma_f32 {v(tmp+i,2)}, {v(Gi[e]+i,2)}, {v(ts+i,2)}, {v(tmp+i,2)}")
            k(f"v_pk_fma_f32 {v(tmp+8+i,2)}, {v(Gr[e]+i,2)}, {v(ts+i,2)}, {v(tmp+8+i,2)} neg_lo:[1,0,0] neg_hi:[1,0,0]")
        for r in range(4):
            cvt(k, Br[e]+r, f"v{tmp+r}", f"v{tmp+4+r}"); cvt(k, Bi[e]+r, f"v{tmp+8+r}", f"v{tmp+12+r}")
        for blk in range(2):
            mfma(k, Gr[e]+4*blk, C[blk], Br[e]); mfma(k, Gi[e]+4*blk, C[blk], Bi[e])
        for blk in range(2):
            mfma(k, Gr[e]+4*blk, S[blk], Bi[e], Gr[e]+4*blk); mfma(k, Gi[e]+4*blk, NS[blk], Br[e], Gi[e]+4*blk)
    for blk in range(2):
        for r in range(4):
            for e in range(2): cvt(k, tmp+8*blk+2*r+e, f"v{Gr[e]+4*blk+r}", f"v{Gi[e]+4*blk+r}")
        k(f"ds_write_b128 v{lw}, {v(tmp+8*blk,4)} offset:{128*blk}\nds_write_b128 v{lw}, {v(tmp+8*blk+4,4)} offset:{128*blk+16}")
    k.probe(); k.wait(lg=0); k("s_barrier"); k.probe()
    o=al.get(12,4)
    for i in range(3):
        k(f"v_add_u32 v{lw}, {4*272*i}, v{lr}" if i else f"v_mov_b32 v{lw}, v{lr}")
        k(f"ds_read2st64_b64 {v(o+4*i,4)}, v{lw} offset0:0 offset1:9")
    for i in range(3):
        if i: k(f"s_add_u32 s25, s25, {4<<18}")
        k(f"buffer_store_dwordx4 {v(o+4*i,4)}, v{zo}, s[20:23], s25 offen{SC['z']}")
    k.probe(); k("s_endpgm")
    k.label("k1_prep"); k.fresh(); k.nop(2)
    al=Alloc(6,128)
    q=al.get(); u=al.get(); k1s=al.get(); ch=al.get(); f=al.get(); a0=al.get(); a3=al.get(); so=al.get(); t=al.get()
    k(f"s_sub_u32 s12, s2, 256\ns_lshl_b32 s12, s12, 5\nv_lshrrev_b32 v{u}, 3, v0\nv_add_u32 v{u}, s12, v{u}\nv_and_b32 v{q}, 7, v0")
    k(f"v_mul_u32_u24 v{k1s}, 6394, v{u}\nv_lshrrev_b32 v{k1s}, 18, v{k1s}\nv_mul_u32_u24 v{ch}, 41, v{k1s}\nv_sub_u32 v{ch}, v{u}, v{ch}")
    k(f"v_lshl_add_u32 v{f}, v{q}, 8, v{k1s}\ns_movk_i32 s30, 642\nv_lshlrev_b32 v{t}, 4, v{ch}")
    k(f"v_mul_u32_u24 v{a0}, s30, v{f}\nv_and_b32 v{a0}, -4, v{a0}\nv_add_u32 v{a0}, v{a0}, v{t}")
    k(f"v_add_u32 v{f}, 192, v{f}\nv_and_b32 v{f}, 2047, v{f}\nv_mul_u32_u24 v{a3}, s30, v{f}\nv_and_b32 v{a3}, -4, v{a3}\nv_add_u32 v{a3}, v{a3}, v{t}")
    k("s_mov_b32 s28, 41088\ns_mov_b32 s29, 82176")
    k.wait(lg=0)
    srd(k,16,6,0,2048*642); srd(k,20,8,0,2048*642)
    d=al.get(16,4); d2=al.get(16,4); o=al.get(32,4)
    for j in range(4):
        ad,sf=(a0,("0","s28","s29")[j]) if j<3 else (a3,"0")
        k(f"buffer_load_dwordx4 {v(d+4*j,4)}, v{ad}, s[16:19], {sf} offen\nbuffer_load_dwordx4 {v(d2+4*j,4)}, v{ad}, s[20:23], {sf} offen")
    srd(k,24,10,OWT,WTSZ)
    k(f"v_and_b32 v{t}, 1, v{k1s}\nv_xor_b32 v{t}, 1, v{t}\nv_lshl_add_u32 v{t}, v{ch}, 3, v{t}\nv_mul_u32_u24 v{so}, {WCS}, v{t}")
    k(f"v_lshl_add_u32 v{so}, v{k1s}, 7, v{so}\nv_lshl_add_u32 v{so}, v{q}, 4, v{so}\nv_bfrev_b32 v{t}, 1\nv_cmp_gt_u32 vcc, 65, v{k1s}\nv_cndmask_b32 v{so}, v{t}, v{so}, vcc")
    k("s_mov_b32 s33, 0x05040100\ns_mov_b32 s34, 0x07060302\ns_mov_b32 s28, 0")
    for e in range(8):
        for j in range(4): k(f"v_perm_b32 v{o+4*e+j}, v{d2+4*j+(e>>1)}, v{d+4*j+(e>>1)}, s{33+(e&1)}")
        k(f"buffer_store_dwordx4 {v(o+4*e,4)}, v{so}, s[24:27], s28 offen{SC['wt']}")
        if e<7: k(f"s_add_u32 s28, s28, {WCS}")
    k.label("k1_end"); k("s_endpgm")
    return k
```

```python
from common import *
NPREP2=185
YSZ=256*352*32
def cmul_tw(k, tmp, Gr, Gi, tc, ts, conj):
    ng="neg_lo:[1,0,0] neg_hi:[1,0,0]"
    for i in range(0,8,2):
        k(f"v_pk_mul_f32 {v(tmp+i,2)}, {v(Gr+i,2)}, {v(tc+i,2)}\nv_pk_mul_f32 {v(tmp+8+i,2)}, {v(Gi+i,2)}, {v(tc+i,2)}")
        k(f"v_pk_fma_f32 {v(tmp+i,2)}, {v(Gi+i,2)}, {v(ts+i,2)}, {v(tmp+i,2)} {'' if conj else ng}")
        k(f"v_pk_fma_f32 {v(tmp+8+i,2)}, {v(Gr+i,2)}, {v(ts+i,2)}, {v(tmp+8+i,2)} {ng if conj else ''}")
def wprep(k, lane, first, endlab):
    al=Alloc(4,128)
    L=[k.newlabel("wp") for _ in range(5)]
    def setm(ptr, sub, stride, rows, NT, Kk, ncb, off, size):
        k(f"s_sub_u32 s12, s12, {sub}")
        srd(k,16,ptr,0,rows*stride); srd(k,20,14,off,size)
        k(f"s_movk_i32 s24, {stride}\ns_movk_i32 s25, {NT}\ns_movk_i32 s26, {(65536+NT-1)//NT}\ns_movk_i32 s27, {Kk}\ns_movk_i32 s28, {(65536+ncb-1)//ncb}\ns_movk_i32 s29, {ncb}")
    k(f"s_cmp_ge_u32 s12, 100\ns_cbranch_scc1 {L[0]}")
    setm(4,0,1280,640,5,20,10,OW1,8*20*5*1024); k(f"s_branch {L[4]}")
    k.label(L[0]); k(f"s_cmp_ge_u32 s12, 200\ns_cbranch_scc1 {L[1]}")
    setm(6,100,1280,640,5,20,10,OW2,8*20*5*1024); k(f"s_branch {L[4]}")
    k.label(L[1]); k(f"s_cmp_ge_u32 s12, 470\ns_cbranch_scc1 {L[2]}")
    setm(8,200,3456,640,7,20,27,OW3,16*20*7*1024); k(f"s_branch {L[4]}")
    k.label(L[2])
    setm(10,470,1280,1728,5,54,10,OW4,8*54*5*1024)
    k.label(L[4])
    k("s_mul_i32 s30, s12, s28\ns_lshr_b32 s30, s30, 16\ns_mul_i32 s31, s30, s29\ns_sub_u32 s31, s12, s31")
    rb=al.get(); cb=al.get(); lo=al.get(); d=al.get(32,4); o=al.get(32,4)
    k(f"v_lshrrev_b32 v{rb}, 3, v{lane}\nv_and_b32 v{cb}, 7, v{lane}")
    k(f"v_lshlrev_b32 v{lo}, 3, v{rb}\nv_mul_u32_u24 v{lo}, s24, v{lo}\nv_lshl_add_u32 v{lo}, v{cb}, 4, v{lo}")
    k("s_lshl_b32 s33, s30, 6\ns_mul_i32 s33, s33, s24\ns_lshl_b32 s34, s31, 7\ns_add_u32 s33, s33, s34")
    for j in range(8):
        k(f"buffer_load_dwordx4 {v(d+4*j,4)}, v{lo}, s[16:19], s33 offen")
        if j<7: k("s_add_u32 s33, s33, s24")
    T=al.get(); g=al.get(); i_=al.get(); p=al.get(); q=al.get(); lp=al.get(); lr=al.get(); l16=al.get(2,1)
    k(f"v_and_b32 v{lp}, 3, v{rb}\nv_lshlrev_b32 v{lp}, 8, v{lp}\nv_and_b32 v{q}, 3, v{cb}\nv_lshl_add_u32 v{lp}, v{q}, 6, v{lp}")
    k(f"v_lshrrev_b32 v{q}, 2, v{rb}\nv_lshrrev_b32 v{p}, 2, v{cb}\nv_lshl_add_u32 v{q}, v{q}, 1, v{p}\nv_mul_u32_u24 v{q}, 2080, v{q}\ns_mul_i32 s35, s3, 8320\nv_add3_u32 v{lp}, v{lp}, v{q}, s35")
    k(f"v_lshlrev_b32 v{l16}, 4, v{lane}\nv_add_u32 v{lr}, s35, v{l16}\ns_lshl_b32 s35, s25, 10\nv_add_u32 v{l16+1}, s35, v{l16}")
    k("s_lshl_b32 s33, s31, 2\ns_sub_u32 s34, s25, 1\ns_lshl_b32 s35, s30, 1")
    k(f"v_and_b32 v{T}, 3, v{lane}\nv_add_u32 v{T}, s33, v{T}")
    k(f"v_mul_u32_u24 v{g}, s26, v{T}\nv_lshrrev_b32 v{g}, 16, v{g}\nv_mul_u32_u24 v{i_}, s25, v{g}\nv_sub_u32 v{i_}, v{T}, v{i_}")
    k(f"v_subrev_u32 v{p}, 1, v{i_}\nv_mov_b32 v{q}, s34\nv_cmp_eq_u32 vcc, 0, v{i_}\nv_cndmask_b32 v{p}, v{p}, v{q}, vcc")
    k(f"v_and_b32 v{q}, 1, v{g}\nv_cmp_eq_u32 vcc, 1, v{q}\nv_cndmask_b32 v{i_}, v{i_}, v{p}, vcc")
    k(f"v_subrev_u32 v{p}, 84, v{T}\nv_mul_u32_u24 v{q}, 43, v{p}\nv_lshrrev_b32 v{q}, 8, v{q}\nv_cmp_le_u32 vcc, 84, v{T}")
    k(f"v_mul_u32_u24 v{T}, 6, v{q}\nv_sub_u32 v{p}, v{p}, v{T}\nv_add_u32 v{q}, 12, v{q}")
    k(f"v_cndmask_b32 v{g}, v{g}, v{q}, vcc\nv_cndmask_b32 v{i_}, v{i_}, v{p}, vcc")
    k(f"v_mov_b32 v{q}, s35\nv_mad_u32_u24 v{g}, v{g}, s27, v{q}\nv_mad_u32_u24 v{g}, v{g}, s25, v{i_}\nv_lshlrev_b32 v{g}, 10, v{g}")
    for t in range(4): k(f"v_readlane_b32 s{36+t}, v{g}, {t}")
    k("s_mov_b32 s33, 0x05040100\ns_mov_b32 s34, 0x07060302")
    for n in range(8):
        for jp in range(4):
            k(f"v_perm_b32 v{o+4*n+jp}, v{d+4*(2*jp+1)+(n>>1)}, v{d+4*(2*jp)+(n>>1)}, s{33+(n&1)}")
        k(f"ds_write_b128 v{lp}, {v(o+4*n,4)} offset:{(n>>2)*1040+(n&3)*16}")
    k.wait(lg=0)
    for f in range(8): k(f"ds_read_b128 {v(d+4*f,4)}, v{lr} offset:{1040*f}")
    for f in range(8): k(f"buffer_store_dwordx4 {v(d+4*f,4)}, v{l16+(f>>2)}, s[20:23], s{36+(f&3)} offen{SC['wf']}")
def gen_k2():
    k=Kern("k2_kernel", 321+NPREP2, lds=4*8320)
    al=Alloc(1,256)
    k(f"s_cmp_ge_u32 s2, {321+NPREP2}\ns_cbranch_scc1 k2_end")
    k("s_load_dwordx2 s[14:15], s[0:1], 80\ns_load_dwordx8 s[4:11], s[0:1], 32")
    lane=al.get(); c=al.get(); h=al.get()
    k(f"v_lshrrev_b32 v{h}, 6, v0\nv_and_b32 v{lane}, 63, v0\nv_readfirstlane_b32 s3, v{h}")
    k(f"v_and_b32 v{c}, 15, v0\nv_lshrrev_b32 v{h}, 4, v{lane}")
    k("s_cmp_ge_u32 s2, 321\ns_cbranch_scc1 k2_prep")
    k("s_lshr_b32 s12, s2, 3\ns_and_b32 s13, s12, 3\ns_lshr_b32 s12, s12, 2\ns_lshl_b32 s12, s12, 3\ns_and_b32 s24, s2, 7\ns_add_u32 s12, s12, s24\ns_lshl_b32 s12, s12, 2\ns_add_u32 s12, s12, s13")
    k("s_add_u32 s13, s12, 32\ns_sub_u32 s24, s12, 304\ns_cmp_lt_u32 s12, 304\ns_cselect_b32 s12, s13, s24")
    k("s_lshl_b32 s13, s12, 13")
    zo=al.get(); wo=al.get()
    k(f"v_lshlrev_b32 v{zo}, 8, v{c}\nv_lshl_add_u32 v{zo}, v{h}, 4, v{zo}")
    k(f"v_lshlrev_b32 v{wo}, 7, v{c}\nv_lshl_add_u32 v{wo}, v{h}, 4, v{wo}\ns_add_u32 s25, s13, 4096")
    srd(k,16,14,OZ,ZSZ);
    k.probe()
    A=[[al.get(4,4) for q in range(4)] for b in range(2)]
    for q in range(4):
        for b in range(2):
            k(f"buffer_load_dwordx4 {v(A[b][q],4)}, v{zo}, s[16:19], s{25 if b else 13} offen offset:{64*q}")
    srd(k,20,14,OWT,WTSZ)
    W=al.get(8,4)
    k(f"s_and_b32 s27, s12, 31\ns_mul_i32 s27, s27, 20\ns_lshr_b32 s24, s12, 5\ns_add_u32 s27, s27, s24\ns_add_u32 s24, s27, 1\ns_sub_u32 s26, 641, s27")
    k(f"s_lshl_b32 s28, s3, 11\ns_sub_u32 s29, {49*128}, s28\nv_sub_u32 v{W}, 1968, v{wo}\ns_cmp_gt_u32 s27, 320\ns_cselect_b32 s24, s26, s24\ns_cselect_b32 s28, s29, s28\ns_cselect_b64 vcc, -1, 0")
    k(f"s_mul_i32 s24, s24, {WCS}\ns_add_u32 s24, s24, s28\nv_cndmask_b32 v{wo}, v{wo}, v{W}, vcc")
    for b in range(2): k(f"buffer_load_dwordx4 {v(W+4*b,4)}, v{wo}, s[20:23], s24 offen offset:{64*b}")
    k.tag("W")
    srd(k,16,14,OY,YSZ)
    cf=al.get(); hf=al.get(); nf=al.get()
    k(f"v_cvt_f32_u32 v{cf}, v{c}\nv_cvt_f32_u32 v{hf}, v{h}\ns_lshl_b32 s24, s3, 4\nv_add_u32 v{nf}, s24, v{c}\nv_cvt_f32_u32 v{nf}, v{nf}")
    Br=[al.get(4,4) for q in range(4)]; Bi=[al.get(4,4) for q in range(4)]
    t=al.get(4,2); st=al.get(); ba=al.get(); msk=al.get()
    k(f"v_mul_f32 v{st}, {f2u(1/64)}, v{nf}\nv_mul_f32 v{ba}, v{hf}, v{st}\nv_mul_f32 v{ba}, 4.0, v{ba}")
    k(f"v_and_b32 v{msk}, 1, v{c}\nv_mul_u32_u24 v{msk}, 0x8000, v{msk}\nv_lshl_or_b32 v{msk}, v{msk}, 16, v{msk}")
    for q in range(2):
        for i in range(4):
            k(f"v_mov_b32 v{t+2}, v{ba}\nv_fmac_f32 v{t+2}, {f2u(float(16*q+i))}, v{st}")
            sincos(k,t,t+1,t+2)
            cvt(k,Br[q]+i,f"v{t}",f"v{t+1}"); cvt(k,Bi[q]+i,f"-v{t+1}",f"v{t}")
            k(f"v_xor_b32 v{Br[q+2]+i}, v{msk}, v{Br[q]+i}\nv_xor_b32 v{Bi[q+2]+i}, v{msk}, v{Bi[q]+i}")
    tc=al.get(8,2); ts=al.get(8,2); uc=al.get(8,2); us=al.get(8,2)
    k(f"v_mul_f32 v{st}, {f2u(1/2048)}, v{nf}\nv_mul_f32 v{ba}, v{hf}, v{st}\nv_mul_f32 v{ba}, 4.0, v{ba}")
    for b in range(2):
        for r in range(4):
            k(f"v_mov_b32 v{t+2}, v{ba}\nv_fmac_f32 v{t+2}, {f2u(float(16*b+r))}, v{st}")
            sincos(k,tc+4*b+r,ts+4*b+r,t+2)
    C,S,NS=dft32_consts(k, al, cf, hf, 'c')
    k.probe()
    Gr=al.get(8,4); Gi=al.get(8,4)
    for q in range(4):
        for b in range(2):
            mfma(k,Gr+4*b,A[b][q],Br[q],None if q==0 else Gr+4*b); mfma(k,Gi+4*b,A[b][q],Bi[q],None if q==0 else Gi+4*b)
    k.probe()
    k(f"s_and_b32 s24, s12, 0xffffffef\ns_cmp_eq_u32 s24, 0\ns_cselect_b32 s26, 0.5, 1.0")
    k(f"s_lshl_b32 s24, s3, 4\nv_lshl_add_u32 v{nf}, v{h}, 2, s24\nv_cvt_f32_u32 v{nf}, v{nf}")
    for b in range(2):
        k(f"v_add_f32 v{st}, {f2u(float(16*b))}, v{cf}\nv_mul_f32 v{st}, {f2u(1/2048)}, v{st}\nv_mul_f32 v{ba}, v{nf}, v{st}")
        for r in range(4):
            k(f"v_mov_b32 v{t+2}, v{ba}\nv_fmac_f32 v{t+2}, {f2u(float(r))}, v{st}")
            sincos(k,uc+4*b+r,us+4*b+r,t+2)
    for i in range(8): k(f"v_mul_f32 v{uc+i}, s26, v{uc+i}\nv_mul_f32 v{us+i}, s26, v{us+i}")
    tmp=al.get(16,4); Dr=al.get(4,4); Di=al.get(4,4)
    cmul_tw(k,tmp,Gr,Gi,tc,ts,True)
    for p in range(4):
        cvt(k,Dr+p,f"v{tmp+2*p}",f"v{tmp+2*p+1}"); cvt(k,Di+p,f"v{tmp+8+2*p}",f"v{tmp+8+2*p+1}")
    k.probe()
    for b in range(2): mfma(k,Gr+4*b,C[b],Dr); mfma(k,Gi+4*b,C[b],Di)
    for b in range(2): mfma(k,Gr+4*b,S[b],Di,Gr+4*b); mfma(k,Gi+4*b,NS[b],Dr,Gi+4*b)
    k.wait_tag("W")
    k(f"s_cmp_gt_u32 s27, 320\ns_cbranch_scc1 k2_mir")
    for i in range(8): unpack(k,tc+i,ts+i,W+i)
    k("s_branch k2_join"); k.label("k2_mir")
    k(f"v_bfrev_b32 v{t}, 1\ns_mov_b32 s28, 0xffff0000")
    for i in range(8): k(f"v_lshlrev_b32 v{tc+i}, 16, v{W+7-i}\nv_bitop3_b32 v{ts+i}, v{W+7-i}, v{t}, s28 bitop3:0x28")
    k.label("k2_join")
    cmul_tw(k,tmp,Gr,Gi,tc,ts,False)
    for p in range(4):
        cvt(k,Dr+p,f"v{tmp+2*p}",f"v{tmp+2*p+1}"); cvt(k,Di+p,f"v{tmp+8+2*p}",f"v{tmp+8+2*p+1}")
    for b in range(2): mfma(k,Gr+4*b,Dr,C[b]); mfma(k,Gi+4*b,Di,C[b])
    for b in range(2): mfma(k,Gr+4*b,Di,NS[b],Gr+4*b); mfma(k,Gi+4*b,Dr,S[b],Gi+4*b)
    lw=al.get(); lr=al.get(); yo=al.get()
    k(f"v_lshlrev_b32 v{lr}, 4, v{lane}\ns_lshl_b32 s24, s3, 11\nv_add_u32 v{lw}, s24, v{lr}")
    k(f"v_lshrrev_b32 v{yo}, 1, v{h}\nv_lshl_add_u32 v{yo}, v{c}, 2, v{yo}\nv_mul_u32_u24 v{yo}, {352*32}, v{yo}\nv_and_b32 v{t}, 1, v{h}\nv_lshl_add_u32 v{yo}, v{t}, 4, v{yo}")
    k(f"s_mul_i32 s24, s3, {64*352*32}\ns_lshl_b32 s25, s12, 5\ns_add_u32 s24, s24, s25\ns_add_u32 s25, s24, {2*352*32}")
    cmul_tw(k,tmp,Gr,Gi,uc,us,False)
    for b in range(2):
        for r in range(4): cvt(k,tc+4*b+r,f"v{tmp+4*b+r}",f"-v{tmp+8+4*b+r}")
        k(f"ds_write_b128 v{lw}, {v(tc+4*b,4)} offset:{1024*b}")
    k.probe(); k.wait(lg=0); k("s_barrier"); k.probe()
    for q in range(4):
        for b in range(2): k(f"ds_read_b128 {v(A[b][q],4)}, v{lr} offset:{2048*q+1024*b}")
    for q in range(4):
        for b in range(2):
            mfma(k,Gr+4*b,A[b][q],Br[q],None if q==0 else Gr+4*b); mfma(k,Gi+4*b,A[b][q],Bi[q],None if q==0 else Gi+4*b)
    for b in range(2):
        for r in range(4): cvt(k,tmp+4*b+r,f"v{Gr+4*b+r}",f"-v{Gi+4*b+r}")
        k(f"buffer_store_dwordx4 {v(tmp+4*b,4)}, v{yo}, s[16:19], s{24+b} offen{SC['y']}")
    k.probe(); k("s_endpgm")
    k.label("k2_prep"); k.fresh(); k.wait(lg=0); k.nop(4)
    k("s_sub_u32 s12, s2, 321\ns_lshl_b32 s12, s12, 2\ns_add_u32 s12, s12, s3")
    wprep(k,lane,0,None)
    k.label("k2_end"); k("s_endpgm")
    return k
if __name__=="__main__":
    from k1 import gen_k1
    open("t.s","w").write(program([gen_k1(),gen_k2()]))
```

```python
from common import *
from k2 import cmul_tw, YSZ
NPREP3=28
LSTR=1032
def row_sums(k, p, x, n):
    k(f"v_pk_add_f32 {v(p,2)}, {v(x,2)}, {v(x+2,2)}\nv_pk_mul_f32 {v(p+2,2)}, {v(x,2)}, {v(x,2)}")
    for j in range(1,n//2):
        if j>1: k(f"v_pk_add_f32 {v(p,2)}, {v(p,2)}, {v(x+2*j,2)}")
        k(f"v_pk_fma_f32 {v(p+2,2)}, {v(x+2*j,2)}, {v(x+2*j,2)}, {v(p+2,2)}")
    k(f"v_add_f32 v{p}, v{p}, v{p+1}\nv_add_f32 v{p+2}, v{p+2}, v{p+3}")
def gen_k3():
    k=Kern("k3_kernel", 256+NPREP3, lds=11*LSTR+64)
    al=Alloc(1,256)
    k(f"s_cmp_ge_u32 s2, {256+NPREP3}\ns_cbranch_scc1 k3_end")
    k("s_load_dwordx2 s[14:15], s[0:1], 80\ns_load_dwordx2 s[4:5], s[0:1], 0")
    lane=al.get(); c=al.get(); h=al.get(); l16=al.get()
    k(f"v_lshrrev_b32 v{h}, 6, v0\nv_and_b32 v{lane}, 63, v0\nv_readfirstlane_b32 s3, v{h}")
    k(f"v_and_b32 v{c}, 15, v0\nv_lshrrev_b32 v{h}, 4, v{lane}\nv_lshlrev_b32 v{l16}, 4, v{lane}")
    k("s_cmp_ge_u32 s2, 256\ns_cbranch_scc1 k3_prep")
    k("s_and_b32 s12, s2, 7\ns_lshl_b32 s12, s12, 5\ns_lshr_b32 s13, s2, 3\ns_add_u32 s12, s12, s13")
    k(f"s_mul_i32 s13, s12, {352*32}\ns_lshl_b32 s24, s3, 10\ns_add_u32 s13, s13, s24\ns_mul_i32 s24, s3, {LSTR}")
    srd(k,16,14,OY,YSZ)
    k.probe()
    for i in range(3):
        if i==2: k("s_cmp_eq_u32 s3, 3\ns_cbranch_scc1 k3_nodma")
        k(f"s_mov_b32 m0, s24\ns_nop 0\nbuffer_load_dwordx4 v{l16}, s[16:19], s13 offen lds")
        if i<2: k(f"s_add_u32 s13, s13, 4096\ns_add_u32 s24, s24, {4*LSTR}")
    k.label("k3_nodma")
    srd(k,20,4,0,2048*1280)
    k("s_lshl_b32 s12, s12, 3\ns_lshl_b32 s13, s3, 1\ns_add_u32 s12, s12, s13\ns_mul_i32 s13, s12, 1280")
    xo=al.get(); x2=al.get(); t=al.get(4,2); m0_=al.get(); m1_=al.get()
    k(f"v_lshlrev_b32 v{xo}, 6, v{c}\nv_lshl_add_u32 v{xo}, v{h}, 4, v{xo}")
    k(f"v_lshrrev_b32 v{t}, 2, v{c}\nv_and_b32 v{t+1}, 3, v{c}\nv_mul_u32_u24 v{x2}, 1280, v{t}\nv_lshl_add_u32 v{x2}, v{t+1}, 6, v{x2}\nv_lshl_add_u32 v{x2}, v{h}, 4, v{x2}")
    k(f"v_bfrev_b32 v{t+2}, 1\nv_cmp_gt_u32 vcc, 8, v{c}\nv_cndmask_b32 v{x2}, v{t+2}, v{x2}, vcc")
    xr=al.get(12,4)
    k(f"buffer_load_dwordx4 {v(xr,4)}, v{xo}, s[20:23], s13 offen\nbuffer_load_dwordx4 {v(xr+4,4)}, v{xo}, s[20:23], s13 offen offset:1280")
    k(f"buffer_load_dwordx4 {v(xr+8,4)}, v{x2}, s[20:23], s13 offen offset:1024")
    so=al.get(); s2o=al.get()
    k(f"v_lshlrev_b32 v{so}, 17, v{c}\nv_lshl_add_u32 v{so}, v{h}, 8, v{so}")
    k(f"v_add_u32 v{s2o}, 16, v{t+1}\nv_lshlrev_b32 v{s2o}, 17, v{s2o}\nv_lshl_add_u32 v{s2o}, v{t}, 4, v{s2o}\nv_lshl_add_u32 v{s2o}, v{h}, 8, v{s2o}\nv_cndmask_b32 v{s2o}, v{t+2}, v{s2o}, vcc")
    k(f"v_cmp_eq_u32 vcc, 0, v{t}\nv_cndmask_b32 v{m0_}, 0, 1.0, vcc\nv_cmp_eq_u32 vcc, 1, v{t}\nv_cndmask_b32 v{m1_}, 0, 1.0, vcc")
    srd(k,16,14,OH,ACTSZ); srd(k,20,14,OA1,ACTSZ); srd(k,24,14,OST1,2048*8)
    k("s_lshr_b32 s13, s12, 4\ns_lshl_b32 s13, s13, 10\ns_and_b32 s28, s12, 15\ns_lshl_b32 s28, s28, 4\ns_add_u32 s13, s13, s28\ns_lshl_b32 s12, s12, 3")
    cf=al.get(); hf=al.get(); st=al.get(); ba=al.get()
    k(f"v_cvt_f32_u32 v{cf}, v{c}\nv_cvt_f32_u32 v{hf}, v{h}")
    C=[al.get(4,4) for _ in range(2)]; S=[al.get(4,4) for _ in range(2)]; NS=[al.get(4,4) for _ in range(2)]
    u=al.get(6,2)
    for tt in range(2):
        k(f"v_fma_f32 v{st}, v{cf}, 2.0, {float(tt)}\nv_mul_f32 v{st}, {f2u(1/32)}, v{st}\nv_mul_f32 v{ba}, v{hf}, v{st}\nv_mul_f32 v{ba}, 4.0, v{ba}")
        for p in range(2):
            for e in range(2):
                k(f"v_mov_b32 v{u+4+e}, v{ba}\nv_fmac_f32 v{u+4+e}, {f2u(float(2*p+e))}, v{st}")
                sincos(k,u+e,u+2+e,u+4+e)
            cvt(k,C[tt]+p,f"v{u}",f"v{u+1}"); cvt(k,S[tt]+p,f"v{u+2}",f"v{u+3}"); cvt(k,NS[tt]+p,f"-v{u+2}",f"-v{u+3}")
            if tt==0: k(f"v_mov_b32 v{C[0]+2+p}, v{C[0]+p}\nv_mov_b32 v{S[0]+2+p}, v{S[0]+p}\nv_mov_b32 v{NS[0]+2+p}, v{NS[0]+p}")
            else: k(f"v_xor_b32 v{C[1]+2+p}, 0x80008000, v{C[1]+p}\nv_mov_b32 v{S[1]+2+p}, v{NS[1]+p}\nv_mov_b32 v{NS[1]+2+p}, v{S[1]+p}")
    tc=al.get(8,2); ts=al.get(8,2); sc=al.get(2,1)
    SC=2.0/(2048*640)
    k(f"v_mov_b32 v{u}, {f2u(SC)}\nv_cmp_gt_u32 vcc, 3, v{h}\nv_cndmask_b32 v{sc}, 0, v{u}, vcc\nv_cmp_gt_u32 vcc, 2, v{h}\nv_cndmask_b32 v{sc+1}, 0, v{u}, vcc")
    for tt in range(2):
        k(f"v_fma_f32 v{st}, v{cf}, 2.0, {float(tt)}\nv_mul_f32 v{st}, {f2u(1/640)}, v{st}\nv_mul_f32 v{ba}, v{hf}, v{st}\nv_mul_f32 v{ba}, 4.0, v{ba}")
        for r in range(4):
            k(f"v_mov_b32 v{u}, v{ba}\nv_fmac_f32 v{u}, {f2u(float(r))}, v{st}")
            sincos(k,tc+4*tt+r,ts+4*tt+r,u)
            k(f"v_mul_f32 v{tc+4*tt+r}, v{sc+(r==3)}, v{tc+4*tt+r}\nv_mul_f32 v{ts+4*tt+r}, v{sc+(r==3)}, v{ts+4*tt+r}")
    B0=al.get(4,4); B1=[al.get(4,4) for _ in range(2)]; w8=al.get(8,2)
    for blk in range(2):
        if blk==0: k(f"v_mul_f32 v{st}, {f2u(1/20)}, v{cf}")
        else: k(f"v_cvt_f32_u32 v{st}, v{t+1}\nv_add_f32 v{st}, {f2u(16.0)}, v{st}\nv_mul_f32 v{st}, {f2u(1/20)}, v{st}")
        k(f"v_mul_f32 v{ba}, v{hf}, v{st}\nv_mul_f32 v{ba}, 4.0, v{ba}")
        for r in range(4):
            k(f"v_mov_b32 v{u}, v{ba}\nv_fmac_f32 v{u}, {f2u(float(r))}, v{st}")
            sincos(k,w8+r,w8+4+r,u)
        D=B0 if blk==0 else B1[0]
        cvt(k,D,f"v{w8}",f"v{w8+1}"); cvt(k,D+1,f"v{w8+2}",f"v{w8+3}"); cvt(k,D+2,f"-v{w8+4}",f"-v{w8+5}"); cvt(k,D+3,f"-v{w8+6}",f"-v{w8+7}")
    k(f"v_cmp_eq_u32 vcc, 1, v{t}")
    for i in range(4): k(f"v_cndmask_b32 v{B1[1]+i}, 0, v{B1[0]+i}, vcc")
    k(f"v_cmp_eq_u32 vcc, 0, v{t}")
    for i in range(4): k(f"v_cndmask_b32 v{B1[0]+i}, 0, v{B1[0]+i}, vcc")
    al.put(w8,8)
    sel=al.get(4,1); lr=al.get()
    k("s_mov_b32 s28, 0x05040100\ns_mov_b32 s29, 0x07060302")
    k(f"v_subrev_u32 v{u}, 1, v{c}\nv_cmp_gt_u32 vcc, 9, v{u}\nv_mov_b32 v{u}, 0x0c0c0c0c\nv_mov_b32 v{u+1}, s28\nv_mov_b32 v{u+2}, s29")
    k(f"v_cndmask_b32 v{sel+1}, v{u}, v{u+1}, vcc\nv_cndmask_b32 v{sel+3}, v{u}, v{u+2}, vcc")
    k(f"v_cmp_eq_u32 vcc, 0, v{lane}\nv_mov_b32 v{u+1}, 0x0c0c0100\nv_mov_b32 v{u+2}, 0x0c0c0302\nv_cndmask_b32 v{sel}, v{sel+1}, v{u+1}, vcc\nv_cndmask_b32 v{sel+2}, v{sel+3}, v{u+2}, vcc")
    k(f"v_min_u32 v{lr}, 10, v{c}\nv_mul_u32_u24 v{lr}, {LSTR}, v{lr}\nv_lshl_add_u32 v{lr}, v{h}, 7, v{lr}\ns_lshl_b32 s30, s3, 3\nv_add_u32 v{lr}, s30, v{lr}")
    k.probe(); k.wait(vm=3); k("s_barrier"); k.probe()
    y=al.get(16,2)
    for j in range(8): k(f"ds_read_b64 {v(y+2*j,2)}, v{lr} offset:{(16*(j>>2)+(j&3))*32}")
    Ar=[al.get(4,4) for _ in range(2)]; Ai=[al.get(4,4) for _ in range(2)]
    Vr=[al.get(8,4) for _ in range(2)]; Vi=[al.get(8,4) for _ in range(2)]
    for e in range(2):
        for p in range(4):
            sr,si=("s28","s29") if p<2 else (f"v{sel+p-2}",f"v{sel+p}")
            k(f"v_perm_b32 v{Ar[e]+p}, v{y+4*p+2+e}, v{y+4*p+e}, {sr}\nv_perm_b32 v{Ai[e]+p}, v{y+4*p+2+e}, v{y+4*p+e}, {si}")
        for tt in range(2): mfma(k,Vr[e]+4*tt,Ar[e],C[tt]); mfma(k,Vi[e]+4*tt,Ai[e],C[tt])
        for tt in range(2): mfma(k,Vr[e]+4*tt,Ai[e],NS[tt],Vr[e]+4*tt); mfma(k,Vi[e]+4*tt,Ar[e],S[tt],Vi[e]+4*tt)
    tmp=y
    O=[al.get(8,4) for _ in range(3)]
    xf=[al.get(8,2) for _ in range(3)]
    for i in range(3):
        for r in range(4): unpack(k,xf[i]+2*r,xf[i]+2*r+1,xr+4*i+r)
    for e in range(2):
        cmul_tw(k,tmp,Vr[e],Vi[e],tc,ts,False)
        for tt in range(2):
            D=Ar[e] if tt==0 else Ai[e]
            cvt(k,D,f"v{tmp+4*tt}",f"v{tmp+4*tt+1}"); cvt(k,D+1,f"v{tmp+4*tt+2}",f"v{tmp+4*tt+3}")
            cvt(k,D+2,f"v{tmp+8+4*tt}",f"v{tmp+8+4*tt+1}"); cvt(k,D+3,f"v{tmp+8+4*tt+2}",f"v{tmp+8+4*tt+3}")
            mfma(k,O[e]+4*tt,D,B0); mfma(k,O[2]+4*tt,D,B1[e],None if e==0 else O[2]+4*tt)
    k.probe()
    hp=xr; pq=[al.get(4,2) for _ in range(3)]
    offs=[(so,0),(so,16),(s2o,0)]
    for i in range(3):
        for r in range(4):
            cvt(k,u,f"v{O[i]+r}",f"v{O[i]+4+r}"); unpack(k,u+2,u+3,u)
            k(f"v_pk_add_f32 {v(xf[i]+2*r,2)}, {v(xf[i]+2*r,2)}, {v(u+2,2)}")
            cvt(k,hp+4*i+r,f"v{xf[i]+2*r}",f"v{xf[i]+2*r+1}"); unpack(k,xf[i]+2*r,xf[i]+2*r+1,hp+4*i+r)
        k(f"buffer_store_dwordx4 {v(hp+4*i,4)}, v{offs[i][0]}, s[16:19], s13 offen offset:{offs[i][1]}")
    mm=al.get(6,2)
    rr=al.get(6,2)
    for it in range(2):
        k.probe()
        for i in range(3): row_sums(k,pq[i],xf[i],8)
        k(f"v_fmac_f32 v{pq[0]}, v{m0_}, v{pq[2]}\nv_fmac_f32 v{pq[0]+2}, v{m0_}, v{pq[2]+2}\nv_fmac_f32 v{pq[1]}, v{m1_}, v{pq[2]}\nv_fmac_f32 v{pq[1]+2}, v{m1_}, v{pq[2]+2}")
        reduce2rows(k,pq[0],pq[0]+2,pq[1],pq[1]+2,pq[0]+1)
        ln_stats(k,pq[0],pq[0]+1,pq[0]+2)
        if it==0:
            k(f"v_lshlrev_b32 v{u}, 3, v{h}\ns_mov_b64 exec, 0x10001\nbuffer_store_dwordx2 {v(pq[0],2)}, v{u}, s[24:27], s12 offen\ns_mov_b64 exec, -1")
        for e in range(2): k(f"v_readlane_b32 s{32+2*e}, v{pq[0]}, {16*e}\nv_readlane_b32 s{33+2*e}, v{pq[0]+1}, {16*e}")
        for e in range(2): k(f"v_mov_b32 v{mm+2*e}, s{32+2*e}\nv_mov_b32 v{rr+2*e}, s{33+2*e}")
        k(f"v_mul_f32 v{mm+4}, v{m0_}, v{mm}\nv_fmac_f32 v{mm+4}, v{m1_}, v{mm+2}\nv_mul_f32 v{rr+4}, v{m0_}, v{rr}\nv_fmac_f32 v{rr+4}, v{m1_}, v{rr+2}")
        for i in range(3):
            for r in range(4):
                x=xf[i]+2*r
                k(f"v_pk_add_f32 {v(x,2)}, {v(x,2)}, {v(mm+2*i,2)} op_sel_hi:[1,0] neg_lo:[0,1] neg_hi:[0,1]")
                cvt(k,u,f"v{x}",f"v{x+1}"); unpack(k,x,x+1,u)
                k(f"v_pk_mul_f32 {v(x,2)}, {v(x,2)}, {v(rr+2*i,2)} op_sel_hi:[1,0]")
                if it==0:
                    cvt(k,u,f"v{x}",f"v{x+1}"); unpack(k,x,x+1,u)
                else: cvt(k,O[i]+r,f"v{x}",f"v{x+1}")
            if it==1: k(f"buffer_store_dwordx4 {v(O[i],4)}, v{offs[i][0]}, s[20:23], s13 offen offset:{offs[i][1]}")
    k.probe(); k("s_endpgm")
    k.label("k3_prep"); k.fresh(); k.wait(lg=0); k.nop(4)
    al=Alloc(8,128)
    k("s_sub_u32 s12, s2, 256\ns_lshl_b32 s12, s12, 2\ns_add_u32 s12, s12, s3\ns_mul_i32 s13, s12, 9363\ns_lshr_b32 s13, s13, 16\ns_mul_i32 s24, s13, 7\ns_sub_u32 s24, s12, s24")
    k(f"s_cmp_ge_u32 s13, 12\ns_cselect_b32 s25, 6, 7\ns_cmp_ge_u32 s24, s25\ns_cbranch_scc1 k3_end")
    k(f"s_mul_i32 s13, s13, 140\ns_add_u32 s13, s13, s24\ns_lshl_b32 s13, s13, 10\ns_lshl_b32 s12, s12, 6")
    srd(k,16,14,OW3,16*20*7*1024); srd(k,20,14,OCS,112*64)
    f=al.get(80,4); one=al.get(4,4); acc=al.get(8,4); o=al.get()
    for i in range(20):
        k(f"buffer_load_dwordx4 {v(f+4*i,4)}, v{l16}, s[16:19], s13 offen")
        if i<19: k("s_add_u32 s13, s13, 7168")
    for i in range(4): k(f"v_mov_b32 v{one+i}, 0x3f803f80")
    k(f"v_lshlrev_b32 v{o}, 4, v{h}")
    for i in range(20): mfma(k,acc+4*(i&1),f+4*i,one,None if i<2 else acc+4*(i&1))
    for i in range(4): k(f"v_add_f32 v{acc+i}, v{acc+i}, v{acc+4+i}")
    k(f"s_mov_b32 s24, 0x10001\ns_mov_b32 s25, 0x10001\ns_mov_b64 exec, s[24:25]\nbuffer_store_dwordx4 {v(acc,4)}, v{o}, s[20:23], s12 offen")
    k.label("k3_end"); k("s_endpgm")
    return k
if __name__=="__main__":
    from k1 import gen_k1
    from k2 import gen_k2
    open("t.s","w").write(program([gen_k1(),gen_k2(),gen_k3()]))
```
